```python
import torch

def _softmax(x, axis=-1):
    return torch.softmax(x, dim=axis)
def _gelu(x):
    return torch.nn.functional.gelu(x, approximate="tanh")
def _silu(x):
    return torch.nn.functional.silu(x)
def _sigmoid(x):
    return torch.sigmoid(x)
def _layernorm(x, axis=-1, eps=1e-5):
    m = x.mean(dim=axis, keepdim=True)
    v = x.var(dim=axis, keepdim=True, unbiased=False)
    return (x - m) / torch.sqrt(v + eps)
def _scatter_add(tgt, idx, src, axis=0):
    return tgt.clone().index_add_(axis, idx, src)
def _segment_sum(src, seg, n):
    out = torch.zeros((n,) + src.shape[1:], dtype=src.dtype)
    return out.index_add_(0, seg, src)
def _pad(x, pw):
    flat = tuple(v for pair in reversed(pw) for v in pair)
    return torch.nn.functional.pad(x, flat)

kernel_name = 'standalone__mha_softmax__near_ridge'

def setup_inputs():

    _w = (lambda a: (lambda t: t.to(torch.bfloat16) if t.is_floating_point() else t)(torch.as_tensor(a)))
    B, H, Sq, Sk, D = 8, 32, 368, 1024, 128
    return {
        "q": _w((lambda *s: torch.randn(*s, dtype=torch.bfloat16) * 0.8)(B, H, Sq, D)),
        "k": _w((lambda *s: torch.randn(*s, dtype=torch.bfloat16) * 0.8)(B, H, Sk, D)),
        "v": _w((lambda *s: torch.randn(*s, dtype=torch.bfloat16) * 0.05)(B, H, Sk, D)),
    }

def reference(q, k, v):
    scale = q.shape[-1] ** -0.5
    scores = torch.einsum("bhqd,bhkd->bhqk", q, k) * scale
    p = _softmax(scores, axis=-1)
    return torch.einsum("bhqk,bhkd->bhqd", p, v)
```

```python
import re

REG_RE = re.compile(r"^(-?)(?:abs\()?([vas])(?:(\d+)|\[(\d+):(\d+)\])\)?$")
TRANS = ("v_exp_f32", "v_log_f32", "v_rcp_f32", "v_rsq_f32", "v_sqrt_f32")


def regs(op):
    op = op.strip()
    m = REG_RE.match(op)
    if m:
        k = m.group(2)
        if m.group(3) is not None:
            return {(k, int(m.group(3)))}
        return {(k, i) for i in range(int(m.group(4)), int(m.group(5)) + 1)}
    if op == "vcc":
        return {("s", "vcc")}
    if op == "m0":
        return {("s", "m0")}
    if op == "exec":
        return {("s", "exec")}
    return set()


class I:
    def __init__(self, text):
        self.text = text
        t = text.split(";")[0].strip()
        parts = t.split(None, 1)
        self.op = parts[0]
        rest = parts[1] if len(parts) > 1 else ""
        ops = [o.strip() for o in rest.split(",")] if rest else []
        mods = ""
        if ops:
            last = ops[-1].split()
            ops[-1] = last[0]
            mods = " ".join(last[1:])
        self.ops = ops
        self.mods = mods
        op = self.op
        self.kind = "other"
        self.w = set(); self.r = set(); self.srcc = set(); self.ab = set()
        self.states = 1
        if op == "s_nop":
            self.states = int(ops[0], 0) + 1
            self.kind = "nop"
        elif op.startswith("v_mfma"):
            self.kind = "mfma"
            self.w = regs(ops[0]); self.ab = regs(ops[1]) | regs(ops[2]); self.srcc = regs(ops[3])
            self.r = self.ab | self.srcc
            self.passes = 8 if "32x32x16" in op else 4
        elif op.startswith("v_cmp"):
            self.kind = "valu"
            self.w = regs(ops[0]); self.r = set().union(*[regs(o) for o in ops[1:]])
        elif op.startswith("v_permlane"):
            self.kind = "valu"
            self.w = regs(ops[0]) | regs(ops[1]); self.r = set(self.w)
        elif op.startswith("v_readfirstlane") or op.startswith("v_readlane"):
            self.kind = "valu"
            self.w = regs(ops[0]); self.r = regs(ops[1])
        elif op.startswith("v_"):
            self.kind = "valu"
            self.w = regs(ops[0]); self.r = set().union(*[regs(o) for o in ops[1:]]) if len(ops) > 1 else set()
            if op.startswith("v_fmac") or op.startswith("v_dot2c"):
                self.r |= self.w
        elif op.startswith("ds_read"):
            self.kind = "ds"; self.w = regs(ops[0]); self.r = regs(ops[1])
        elif op.startswith("ds_write"):
            self.kind = "ds"; self.r = set().union(*[regs(o) for o in ops])
        elif op.startswith("buffer_load"):
            self.kind = "vmem"
            if "lds" in mods.split():
                self.r = set().union(*[regs(o) for o in ops]) | {("s", "m0")}
                self.dma = True
            else:
                self.w = regs(ops[0]); self.r = set().union(*[regs(o) for o in ops[1:]])
        elif op.startswith("buffer_store") or op.startswith("global_store"):
            self.kind = "vmem"; self.r = set().union(*[regs(o) for o in ops])
            self.store_data = regs(ops[0]) if op.startswith("buffer") else regs(ops[1])
            self.wide = op.endswith("x4") or op.endswith("x3")
        elif op.startswith("s_"):
            self.kind = "salu"
            if op.startswith(("s_cmp", "s_waitcnt", "s_barrier", "s_branch", "s_cbranch", "s_setprio", "s_endpgm", "s_sleep")):
                self.r = set().union(*[regs(o) for o in ops]) if ops else set()
            else:
                self.w = regs(ops[0]); self.r = set().union(*[regs(o) for o in ops[1:]]) if len(ops) > 1 else set()
        self.trans = op.replace("_e32", "").replace("_e64", "") in TRANS


def need(p, c):
    n = 0
    vw = {x for x in p.w if x[0] in "va"}
    sw = {x for x in p.w if x[0] == "s"}
    if p.kind == "valu":
        if c.kind == "mfma" and vw & c.r:
            n = max(n, 2)
        if c.op.startswith("v_permlane") and vw & c.r:
            n = max(n, 2)
        if c.op.startswith(("v_readfirstlane", "v_readlane")) and vw & c.r:
            n = max(n, 1)
        if p.trans and c.kind == "valu" and vw & c.r and not c.trans:
            n = max(n, 1)
        if p.trans and c.kind == "valu" and vw & c.r and c.trans:
            n = max(n, 1)
        if sw and c.kind == "vmem" and sw & c.r:
            n = max(n, 5)
        if sw and c.kind == "valu" and sw & c.r:
            n = max(n, 2)
        if sw and c.kind == "salu" and sw & c.r:
            n = max(n, 1)
    if p.kind == "mfma":
        big = {8: 12, 4: 8}[p.passes]
        ovl = {8: 10, 4: 6}[p.passes]
        war = {8: 7, 4: 3}[p.passes]
        if c.kind == "mfma":
            if p.w & c.ab:
                n = max(n, big)
            if p.w & c.srcc and not (p.w == c.srcc and p.passes == c.passes):
                n = max(n, ovl)
            if p.w & c.w and not (p.w == c.srcc and c.w == p.w):
                if p.w != c.w:
                    n = max(n, ovl)
        elif c.kind in ("valu", "vmem", "ds"):
            if p.w & (c.r | c.w):
                n = max(n, big)
            if c.kind == "valu" and p.srcc & c.w:
                n = max(n, war)
    if p.kind == "salu" and ("s", "m0") in p.w and getattr(c, "dma", False):
        n = max(n, 1)
    if p.kind == "vmem" and getattr(p, "wide", False) and c.w & p.store_data:
        n = max(n, 2 if c.kind == "valu" else 1)
    return n


def check_stream(lines, label=""):
    ins = []
    for l in lines:
        t = l.split(";")[0].strip()
        if not t or t.endswith(":") or t.startswith("."):
            continue
        ins.append(I(t))
    bad = 0
    for i, p in enumerate(ins):
        dist = 0
        for j in range(i + 1, min(i + 24, len(ins))):
            c = ins[j]
            nd = need(p, c)
            if dist < nd:
                print(f"HAZARD[{label}] need {nd} have {dist}: '{p.text}' -> '{c.text}'")
                bad += 1
            dist += c.states
            if dist >= 20:
                break
    return bad
```

```python
import sys, struct, argparse, math
sys.path.insert(0, "dev")
import hazard

NAME = "standalone__mha_softmax__near_ridge_kernel"
SQ, SK, D = 368, 1024, 128
NT = SK // 32
QBYTES = SQ * D * 2
KBYTES = SK * D * 2
WREG = 4160
SLOT = 4 * WREG
KOFF = (2048, 3104)


def f2u(x):
    return struct.unpack("<I", struct.pack("<f", x))[0]


V_LANE = 1
V_VD = (2, 3)
V_KD = (4, 5)
V_KB, V_VB = 6, 7
V_KA, V_VA = 8, 9
V_L = (10, 11, 12)
V_QO = 13
V_T0, V_T1 = 14, 15
V_P = (16, 24, 32)
V_TMP = 40
V_S = (64, 80, 96)
V_C = (112, 128, 144)
V_Q = (160, 192, 224)
A_O = lambda qb, db: qb * 64 + db * 16
A_K = lambda ks: 192 + 4 * ks
A_V = lambda i: 224 + 4 * i

S_Q, S_K, S_V, S_O = 16, 20, 24, 28
S_SOFF, S_RD, S_RD1, S_RD2, S_WOFF, S_WAVE, S_CNT, S_TRY = 32, 33, 34, 35, 36, 37, 38, 39
S_SC = 40
S_T = 42
S_MASK = 48
S_STAMP = 60


def vr(b, n=1):
    return f"v{b}" if n == 1 else f"v[{b}:{b + n - 1}]"


def ar(b, n=1):
    return f"a{b}" if n == 1 else f"a[{b}:{b + n - 1}]"


def sr(b, n=1):
    return f"s{b}" if n == 1 else f"s[{b}:{b + n - 1}]"


class Gen:
    def __init__(self, o):
        self.o = o
        self.L = []
        self.R = o.ring
        self.nstamp = 0
        self.FLAG = self.R * SLOT

    def e(self, s):
        self.L.append("    " + s)

    def lab(self, s):
        self.L.append(s + ":")

    def c(self, s):
        self.L.append("    ; " + s)

    def stamp(self):
        if not self.o.stamps:
            return
        i = self.nstamp
        self.nstamp += 1
        self.e(f"s_memtime {sr(S_STAMP + 2 * i, 2)}")
        self.e("s_waitcnt lgkmcnt(0)")

    def mfma_qk(self, qb, ks, cinit=True):
        s = vr(V_S[qb], 16)
        if ks == 0:
            cc = vr(V_C[qb], 16) if cinit else "0"
        else:
            cc = s
        return f"v_mfma_f32_32x32x16_bf16 {s}, {ar(A_K(ks), 4)}, {vr(V_Q[qb] + 4 * ks, 4)}, {cc}"

    def mfma_pv(self, qb, i):
        kt, db = i >> 2, i & 3
        o = ar(A_O(qb, db), 16)
        return f"v_mfma_f32_32x32x16_bf16 {o}, {ar(A_V(i), 4)}, {vr(V_P[qb] + 4 * kt, 4)}, {o}"

    def rd_k(self, ks):
        return f"ds_read_b128 {ar(A_K(ks), 4)}, {vr(V_KA)} offset:{32 * ks}"

    def rd_v(self, j):
        i, eh = j >> 1, j & 1
        kt, db = i >> 2, i & 3
        return f"ds_read_b64_tr_b16 {ar(A_V(i) + 2 * eh, 2)}, {vr(V_VA)} offset:{kt * 1024 + eh * 512 + db * 64}"

    def dma(self, j):
        nt = " nt" if self.o.nt else ""
        if j < 2:
            return f"buffer_load_dwordx4 {vr(V_VD[j])}, {sr(S_V, 4)}, {sr(S_SOFF)} offen offset:{1024 * j}{nt} lds"
        return f"buffer_load_dwordx4 {vr(V_KD[j - 2])}, {sr(S_K, 4)}, {sr(S_SOFF)} offen offset:{KOFF[j - 2]}{nt} lds"

    def sm_exp(self, n):
        b, e_ = (n // 16) % 3, n % 16
        r = V_S[b] + e_
        return f"v_exp_f32 {vr(r)}, {vr(r)}"

    def sm_add(self, n):
        n %= 48
        b, e_ = n // 16, n % 16
        return f"v_add_f32 {vr(V_L[b])}, {vr(V_L[b])}, {vr(V_S[b] + e_)}"

    def sm_cvt(self, n):
        n %= 48
        b, e_ = n // 16, n % 16
        return f"v_cvt_pk_bf16_f32 {vr(V_P[b] + e_ // 2)}, {vr(V_S[b] + e_)}, {vr(V_S[b] + e_ + 1)}"

    def k0_dma(self, soff):
        base = (self.R - 1) * SLOT
        nt = " nt" if self.o.nt else ""
        for j in range(2):
            self.e(f"s_add_u32 m0, {sr(S_WOFF)}, {base + KOFF[j]}")
            self.e(f"v_subrev_u32 {vr(V_T0 + j)}, {8192 - KOFF[j]}, {vr(V_KD[j])}")
            self.e(f"buffer_load_dwordx4 {vr(V_T0 + j)}, {sr(S_K, 4)}, {soff} offen{nt} lds")

    def groups_dma(self):
        self.e(f"s_mov_b32 {sr(S_SOFF)}, 0")
        for g in range(self.R - 2):
            self.e(f"s_add_u32 m0, {sr(S_WOFF)}, {g * SLOT}")
            self.e("s_nop 0")
            for j in range(4):
                self.e(self.dma(j))
            self.e(f"s_add_u32 {sr(S_SOFF)}, {sr(S_SOFF)}, 8192")

    def zero_state(self):
        for i in range(192):
            self.e(f"v_accvgpr_write_b32 {ar(i)}, 0")
        for i in range(32):
            self.e(f"v_accvgpr_write_b32 {ar(224 + i)}, 0")
        for i in range(24):
            self.e(f"v_mov_b32 {vr(V_P[0] + i)}, 0")
        for b in range(3):
            self.e(f"v_mov_b32 {vr(V_L[b])}, 0")
        self.e(f"s_mov_b32 {sr(S_RD)}, 0")
        self.e(f"s_mov_b32 {sr(S_RD1)}, {(self.R - 1) * SLOT}")
        self.e(f"s_mov_b32 {sr(S_RD2)}, {(self.R - 2) * SLOT}")
        self.e(f"s_mov_b32 {sr(S_CNT)}, 0")

    def read_k0(self):
        self.e(f"v_add_u32 {vr(V_KA)}, {(self.R - 1) * SLOT}, {vr(V_KB)}")
        for ks in range(8):
            self.e(self.rd_k(ks))

    def scale_q(self, qb):
        for i in range(32):
            q = V_Q[qb] + i
            t = V_TMP + 2 * (i % 4)
            self.e(f"v_lshlrev_b32 {vr(t)}, 16, {vr(q)}")
            self.e(f"v_and_b32 {vr(t + 1)}, {sr(S_MASK)}, {vr(q)}")
            self.e(f"v_pk_mul_f32 {vr(t, 2)}, {vr(t, 2)}, {sr(S_SC, 2)}")
            self.e(f"v_cvt_pk_bf16_f32 {vr(q)}, {vr(t)}, {vr(t + 1)}")

    def lane_max(self, qb, dst, acc=False):
        s = V_S[qb]
        if acc:
            self.e(f"v_max3_f32 {vr(dst)}, {vr(dst)}, {vr(s)}, {vr(s + 1)}")
        else:
            self.e(f"v_max_f32 {vr(dst)}, {vr(s)}, {vr(s + 1)}")
        for i in range(2, 16, 2):
            self.e(f"v_max3_f32 {vr(dst)}, {vr(dst)}, {vr(s + i)}, {vr(s + i + 1)}")

    def fill_c(self, qb, m, t):
        self.e(f"v_mov_b32 {vr(t)}, {vr(m)}")
        self.e("s_nop 1")
        self.e(f"v_permlane32_swap_b32 {vr(m)}, {vr(t)}")
        self.e("s_nop 1")
        self.e(f"v_max_f32 {vr(m)}, {vr(m)}, {vr(t)}")
        for i in range(16):
            self.e(f"v_sub_f32 {vr(V_C[qb] + i)}, 0, {vr(m)}")

    def init_s2(self):
        g0 = self.o.sm0
        nlast = (47 - g0) % 48
        assert 32 <= nlast < 47
        for e_ in range(16):
            n = 32 + e_
            val = "0" if n <= nlast else "0xff800000"
            self.e(f"v_mov_b32 {vr(V_S[2] + e_)}, {val}")
        self.e(f"v_add_u32 {vr(V_VA)}, {sr(S_RD)}, {vr(V_VB)}")
        self.e(f"v_add_u32 {vr(V_KA)}, {sr(S_RD)}, {vr(V_KB)}")

    def loop_body(self):
        o = self.o
        R = self.R
        mf = []
        for ks in range(8): mf.append(self.mfma_qk(0, ks))
        for i in range(8): mf.append(self.mfma_pv(1, i))
        for ks in range(8): mf.append(self.mfma_qk(1, ks))
        for i in range(8): mf.append(self.mfma_pv(2, i))
        for ks in range(8): mf.append(self.mfma_qk(2, ks))
        for i in range(8): mf.append(self.mfma_pv(0, i))
        pre = [[] for _ in range(48)]
        gap = [[] for _ in range(48)]
        g0 = o.sm0
        if not o.nosm:
            for n in range(48):
                g = (g0 + n) % 48
                gap[g].append(self.sm_exp(n))
                gap[g].append(self.sm_add(n - 1))
                if n % 2 == 0:
                    gap[g].append(self.sm_cvt(n - 2))
        gap[0].append(f"s_add_u32 m0, {sr(S_RD2)}, {sr(S_WOFF)}")
        if not o.nodma:
            for j, g in enumerate(o.dmagaps):
                gap[g].append(self.dma(j))
        gap[21].append(f"s_add_u32 {sr(S_SOFF)}, {sr(S_SOFF)}, 8192")
        if not o.nodma:
            gap[23].append(f"s_waitcnt vmcnt({4 * (R - 2)})")
        if not o.nobar:
            gap[23].append("s_barrier")
        if not o.nolds:
            for j in range(16):
                gap[24 + j].append(self.rd_v(j))
            for ks in range(8):
                gap[40 + ks].append(self.rd_k(ks))
            pre[40].append("s_waitcnt lgkmcnt(8)")
            pre[44].append("s_waitcnt lgkmcnt(4)")
            pre[0].append("s_waitcnt lgkmcnt(4)")
            pre[4].append("s_waitcnt lgkmcnt(0)")
        gap[3].append(f"s_mov_b32 {sr(S_RD2)}, {sr(S_RD1)}")
        gap[3].append(f"s_mov_b32 {sr(S_RD1)}, {sr(S_RD)}")
        gap[5].append(f"s_add_u32 {sr(S_RD)}, {sr(S_RD)}, {SLOT}")
        gap[5].append(f"s_cmp_eq_u32 {sr(S_RD)}, {R * SLOT}")
        gap[5].append(f"s_cselect_b32 {sr(S_RD)}, 0, {sr(S_RD)}")
        gap[41].append(f"v_add_u32 {vr(V_VA)}, {sr(S_RD)}, {vr(V_VB)}")
        gap[47].append(f"v_add_u32 {vr(V_KA)}, {sr(S_RD)}, {vr(V_KB)}")
        gap[45].append(f"s_add_u32 {sr(S_CNT)}, {sr(S_CNT)}, 1")
        gap[47].append(f"s_cmp_lt_u32 {sr(S_CNT)}, {NT}")
        body = []
        for g in range(48):
            body += pre[g]
            body.append(mf[g])
            body += gap[g]
        return body

    def drain(self):
        o = self.o
        g0 = o.sm0
        nlast = (47 - g0) % 48
        rest = []
        for n in range(nlast + 1, 49):
            if n < 48:
                rest.append(self.sm_exp(n))
            else:
                rest.append("s_nop 0")
            rest.append(self.sm_add(n - 1))
            if n % 2 == 0:
                rest.append(self.sm_cvt(n - 2))
        if o.nosm:
            rest = []
        per = -(-len(rest) // 8)
        for i in range(8):
            self.e(self.mfma_pv(1, i))
            for x in rest[i * per:(i + 1) * per]:
                self.e(x)
        self.e("s_nop 1")
        for i in range(8):
            self.e(self.mfma_pv(2, i))

    def epilogue(self):
        for b in range(3):
            self.e(f"v_mov_b32 {vr(V_TMP + b)}, {vr(V_L[b])}")
        self.e("s_nop 1")
        for b in range(3):
            self.e(f"v_permlane32_swap_b32 {vr(V_L[b])}, {vr(V_TMP + b)}")
        self.e("s_nop 1")
        for b in range(3):
            self.e(f"v_add_f32 {vr(V_L[b])}, {vr(V_L[b])}, {vr(V_TMP + b)}")
        self.e(f"v_mov_b32 {vr(V_T0)}, 0x5d800000")
        self.e(f"v_cmp_nlt_f32 {sr(S_T, 2)}, {vr(V_L[0])}, {vr(V_T0)}")
        self.e(f"v_cmp_nlt_f32 {sr(S_T + 2, 2)}, {vr(V_L[1])}, {vr(V_T0)}")
        self.e(f"v_cmp_nlt_f32 vcc, {vr(V_L[2])}, {vr(V_T0)}")
        for b in range(3):
            self.e(f"v_rcp_f32 {vr(V_L[b])}, {vr(V_L[b])}")
        self.e(f"s_or_b64 {sr(S_T, 2)}, {sr(S_T, 2)}, {sr(S_T + 2, 2)}")
        self.e(f"s_or_b64 {sr(S_T, 2)}, {sr(S_T, 2)}, vcc")
        self.e(f"s_cselect_b32 {sr(S_T)}, 1, 0")
        self.e(f"s_lshl_b32 {sr(S_T + 1)}, {sr(S_WAVE)}, 2")
        self.e(f"s_add_u32 {sr(S_T + 1)}, {sr(S_T + 1)}, {self.FLAG}")
        self.e(f"v_mov_b32 {vr(V_T0)}, {sr(S_T)}")
        self.e(f"v_mov_b32 {vr(V_T1)}, {sr(S_T + 1)}")
        self.e(f"ds_write_b32 {vr(V_T1)}, {vr(V_T0)}")
        self.e("s_nop 7")
        tb = V_S[0]
        n = 0
        for b in range(3):
            oo = V_TMP + 4 + b
            self.e(f"v_add_u32 {vr(oo)}, {b * 8192}, {vr(V_QO)}")
            for db in range(4):
                for gp in range(2):
                    t = tb + 12 * (n % 8)
                    n += 1
                    a0 = A_O(b, db) + 8 * gp
                    for i in range(8):
                        self.e(f"v_accvgpr_read_b32 {vr(t + i)}, {ar(a0 + i)}")
                    for i in range(8):
                        self.e(f"v_mul_f32 {vr(t + i)}, {vr(t + i)}, {vr(V_L[b])}")
                    for i in range(4):
                        self.e(f"v_cvt_pk_bf16_f32 {vr(t + 8 + i)}, {vr(t + 2 * i)}, {vr(t + 2 * i + 1)}")
                    self.e("s_nop 1")
                    self.e(f"v_permlane32_swap_b32 {vr(t + 8)}, {vr(t + 10)}")
                    self.e(f"v_permlane32_swap_b32 {vr(t + 9)}, {vr(t + 11)}")
                    self.e(f"buffer_store_dwordx4 {vr(t + 8, 4)}, {vr(oo)}, {sr(S_O, 4)}, 0 offen offset:{64 * db + 32 * gp}")

    def gen(self):
        o = self.o
        R = self.R
        lds = R * SLOT + 64
        hdr = open("standalone__mha_softmax__near_ridge.s.ref").read().split("\n")
        head = []
        for l in hdr:
            if l.startswith("; @launch"):
                head.append(f"; @launch grid=(256,1,1) block=(256,1,1) lds={lds}")
                break
            head.append(l)
        L = self.L
        e = self.e
        L += head
        L += ['.amdgcn_target "amdgcn-amd-amdhsa--gfx950"', ".text", f".globl {NAME}", ".p2align 8",
              f".type {NAME},@function", f"{NAME}:"]
        e("s_cmp_ge_u32 s2, 256")
        e("s_cbranch_scc1 L_end")
        e("s_load_dwordx8 s[4:11], s[0:1], 0")
        if o.stamps:
            e("s_load_dwordx4 s[12:15], s[0:1], 32")
            e(f"s_memrealtime {sr(S_STAMP + 28, 2)}")
        self.stamp()
        e(f"v_and_b32 {vr(V_LANE)}, 63, v0")
        e(f"v_lshrrev_b32 {vr(V_T0)}, 6, v0")
        e("s_nop 0")
        e(f"v_readfirstlane_b32 {sr(S_WAVE)}, {vr(V_T0)}")
        t0, t1, t2, t3 = V_TMP, V_TMP + 1, V_TMP + 2, V_TMP + 3
        e(f"v_lshrrev_b32 {vr(t0)}, 4, {vr(V_LANE)}")
        e(f"v_and_b32 {vr(t1)}, 15, {vr(V_LANE)}")
        e(f"v_lshl_add_u32 {vr(t2)}, {vr(t0)}, 2, {vr(V_T0)}")
        e(f"v_lshlrev_b32 {vr(t2)}, 8, {vr(t2)}")
        e(f"v_lshl_add_u32 {vr(V_VD[0])}, {vr(t1)}, 4, {vr(t2)}")
        e(f"v_add_u32 {vr(V_VD[1])}, 3072, {vr(V_VD[0])}")
        e(f"v_and_b32 {vr(t2)}, 1, {vr(t0)}")
        e(f"v_xor_b32 {vr(t1)}, {vr(t1)}, {vr(t2)}")
        e(f"v_lshrrev_b32 {vr(t3)}, 1, {vr(t0)}")
        e(f"v_lshl_add_u32 {vr(t2)}, {vr(t3)}, 2, {vr(t2)}")
        e(f"v_lshl_add_u32 {vr(t2)}, {vr(V_T0)}, 3, {vr(t2)}")
        e(f"v_lshlrev_b32 {vr(t2)}, 8, {vr(t2)}")
        e(f"v_lshl_add_u32 {vr(t2)}, {vr(t1)}, 4, {vr(t2)}")
        e(f"v_add_u32 {vr(V_KD[0])}, {8192 - KOFF[0]}, {vr(t2)}")
        e(f"v_add_u32 {vr(V_KD[1])}, {8192 + 512 - KOFF[1]}, {vr(t2)}")
        e(f"v_and_b32 {vr(t0)}, 31, {vr(V_LANE)}")
        e(f"v_lshrrev_b32 {vr(t1)}, 5, {vr(V_LANE)}")
        e(f"v_mul_u32_u24 {vr(t2)}, 96, {vr(V_T0)}")
        e(f"v_add_u32 {vr(t2)}, {vr(t2)}, {vr(t0)}")
        e(f"v_lshlrev_b32 {vr(t2)}, 8, {vr(t2)}")
        e(f"v_lshl_add_u32 {vr(V_QO)}, {vr(t1)}, 4, {vr(t2)}")
        e(f"s_mul_i32 {sr(S_WOFF)}, {sr(S_WAVE)}, {WREG}")
        e("s_waitcnt lgkmcnt(0)")
        e(f"s_mul_i32 {sr(S_T)}, s2, {QBYTES}")
        e(f"s_add_u32 {sr(S_Q)}, s4, {sr(S_T)}")
        e(f"s_addc_u32 {sr(S_Q + 1)}, s5, 0")
        e(f"s_add_u32 {sr(S_O)}, s10, {sr(S_T)}")
        e(f"s_addc_u32 {sr(S_O + 1)}, s11, 0")
        e(f"s_lshl_b32 {sr(S_T)}, s2, 18")
        e(f"s_add_u32 {sr(S_K)}, s6, {sr(S_T)}")
        e(f"s_addc_u32 {sr(S_K + 1)}, s7, 0")
        e(f"s_add_u32 {sr(S_V)}, s8, {sr(S_T)}")
        e(f"s_addc_u32 {sr(S_V + 1)}, s9, 0")
        for s_, nb in ((S_Q, QBYTES), (S_O, QBYTES), (S_K, KBYTES), (S_V, KBYTES)):
            e(f"s_mov_b32 {sr(s_ + 2)}, {nb}")
            e(f"s_mov_b32 {sr(s_ + 3)}, 0x20000")
        self.k0_dma("0")
        for b in range(3):
            if b:
                e(f"v_add_u32 {vr(V_TMP + 4 + b)}, {8192 * b}, {vr(V_QO)}")
            oo = V_QO if b == 0 else V_TMP + 4 + b
            for ks in range(8):
                e(f"buffer_load_dwordx4 {vr(V_Q[b] + 4 * ks, 4)}, {vr(oo)}, {sr(S_Q, 4)}, 0 offen offset:{32 * ks}")
        self.groups_dma()
        ng = 4 * (R - 2)
        e(f"v_lshrrev_b32 {vr(t2)}, 3, {vr(t0)}")
        e(f"v_mul_u32_u24 {vr(V_KB)}, {WREG}, {vr(t2)}")
        e(f"v_bfe_u32 {vr(t2)}, {vr(t0)}, 1, 1")
        e(f"v_mul_u32_u24 {vr(t2)}, 1056, {vr(t2)}")
        e(f"v_add_u32 {vr(V_KB)}, {vr(V_KB)}, {vr(t2)}")
        e(f"v_bfe_u32 {vr(t2)}, {vr(t0)}, 2, 1")
        e(f"v_lshl_add_u32 {vr(V_KB)}, {vr(t2)}, 9, {vr(V_KB)}")
        e(f"v_and_b32 {vr(t2)}, 1, {vr(t0)}")
        e(f"v_lshl_add_u32 {vr(V_KB)}, {vr(t2)}, 8, {vr(V_KB)}")
        e(f"v_xor_b32 {vr(t2)}, {vr(t2)}, {vr(t1)}")
        e(f"v_lshl_add_u32 {vr(V_KB)}, {vr(t2)}, 4, {vr(V_KB)}")
        e(f"v_add_u32 {vr(V_KB)}, 2048, {vr(V_KB)}")
        e(f"v_bfe_u32 {vr(t2)}, {vr(V_LANE)}, 2, 2")
        e(f"v_mul_u32_u24 {vr(V_VB)}, {WREG}, {vr(t2)}")
        e(f"v_lshl_add_u32 {vr(V_VB)}, {vr(t1)}, 8, {vr(V_VB)}")
        e(f"v_bfe_u32 {vr(t2)}, {vr(V_LANE)}, 4, 1")
        e(f"v_lshl_add_u32 {vr(V_VB)}, {vr(t2)}, 5, {vr(V_VB)}")
        e(f"v_and_b32 {vr(t2)}, 3, {vr(V_LANE)}")
        e(f"v_lshl_add_u32 {vr(V_VB)}, {vr(t2)}, 3, {vr(V_VB)}")
        cst = f2u(D ** -0.5 * math.log2(math.e))
        e(f"s_mov_b32 {sr(S_SC)}, {cst:#x}")
        e(f"s_mov_b32 {sr(S_SC + 1)}, {cst:#x}")
        e(f"s_mov_b32 {sr(S_MASK)}, 0xffff0000")
        e(f"s_mov_b32 {sr(S_TRY)}, 0")
        self.zero_state()
        self.stamp()
        e(f"s_waitcnt vmcnt({ng + 24})")
        e("s_barrier")
        self.read_k0()
        self.stamp()
        m = (V_TMP + 10, V_TMP + 11, V_TMP + 12)
        tt = V_TMP + 13
        for b in range(3):
            e(f"s_waitcnt vmcnt({ng + 16 - 8 * b})")
            self.scale_q(b)
            if b == 0:
                e("s_waitcnt lgkmcnt(0)")
            e("s_nop 1")
            for ks in range(8):
                e(self.mfma_qk(b, ks, cinit=False))
            if b >= 1:
                self.lane_max(b - 1, m[b - 1])
                self.fill_c(b - 1, m[b - 1], tt)
        e("s_nop 7")
        self.lane_max(2, m[2])
        self.fill_c(2, m[2], tt)
        self.lab("L_start")
        self.init_s2()
        self.stamp()
        e("s_nop 1")
        if o.align:
            L.append(f".p2align {o.align}")
        self.lab("L_loop")
        body = self.loop_body()
        for x in body:
            e(x)
        e("s_cbranch_scc1 L_loop")
        self.body = body
        self.stamp()
        self.drain()
        self.stamp()
        self.epilogue()
        self.stamp()
        e("s_waitcnt lgkmcnt(0)")
        e("s_barrier")
        e(f"v_mov_b32 {vr(V_T1)}, {self.FLAG}")
        e(f"ds_read_b128 {vr(V_TMP, 4)}, {vr(V_T1)}")
        e("s_waitcnt lgkmcnt(0)")
        e(f"v_or_b32 {vr(V_TMP)}, {vr(V_TMP)}, {vr(V_TMP + 1)}")
        e(f"v_or3_b32 {vr(V_TMP)}, {vr(V_TMP)}, {vr(V_TMP + 2)}, {vr(V_TMP + 3)}")
        e("s_nop 1")
        e(f"v_readfirstlane_b32 {sr(S_T)}, {vr(V_TMP)}")
        e("s_nop 3")
        e(f"s_andn2_b32 {sr(S_T)}, {sr(S_T)}, {sr(S_TRY)}")
        e("s_cbranch_scc1 L_fallback")
        if o.stamps:
            e("s_waitcnt vmcnt(0)")
            self.stamp()
            e(f"s_memrealtime {sr(S_STAMP + 30, 2)}")
            e("s_waitcnt lgkmcnt(0)")
            e(f"s_lshl_b32 {sr(S_T)}, s2, 2")
            e(f"s_add_u32 {sr(S_T)}, {sr(S_T)}, {sr(S_WAVE)}")
            e(f"s_lshl_b32 {sr(S_T)}, {sr(S_T)}, 7")
            e(f"v_mov_b32 {vr(V_T0)}, {sr(S_T)}")
            for i in range(16):
                e(f"v_mov_b32 {vr(V_TMP)}, {sr(S_STAMP + 2 * i)}")
                e(f"v_mov_b32 {vr(V_TMP + 1)}, {sr(S_STAMP + 2 * i + 1)}")
                e(f"global_store_dwordx2 {vr(V_T0)}, {vr(V_TMP, 2)}, s[14:15] offset:{8 * i}")
                e("s_nop 1")
        self.lab("L_end")
        e("s_endpgm")
        self.lab("L_fallback")
        e(f"s_mov_b32 {sr(S_TRY)}, 1")
        e("s_waitcnt vmcnt(0)")
        for b in range(3):
            e(f"v_mov_b32 {vr(m[b])}, 0xff800000")
        e(f"s_mov_b32 {sr(S_T + 4)}, 0")
        self.lab("L_fb_loop")
        e("s_barrier")
        self.k0_dma(sr(S_T + 4))
        e("s_waitcnt vmcnt(0)")
        e("s_barrier")
        self.read_k0()
        e("s_waitcnt lgkmcnt(0)")
        for b in range(3):
            for ks in range(8):
                e(self.mfma_qk(b, ks, cinit=False))
        e("s_nop 15")
        for b in range(3):
            self.lane_max(b, m[b], acc=True)
        e(f"s_add_u32 {sr(S_T + 4)}, {sr(S_T + 4)}, 8192")
        e(f"s_cmp_lt_u32 {sr(S_T + 4)}, {KBYTES}")
        e("s_cbranch_scc1 L_fb_loop")
        for b in range(3):
            self.fill_c(b, m[b], tt)
        e("s_barrier")
        self.k0_dma("0")
        self.groups_dma()
        self.zero_state()
        e(f"s_waitcnt vmcnt({ng})")
        e("s_barrier")
        self.read_k0()
        e("s_waitcnt lgkmcnt(0)")
        e("s_branch L_start")
        L += ['.section .rodata,"a"', ".p2align 6", f".amdhsa_kernel {NAME}",
              "  .amdhsa_next_free_vgpr 512", "  .amdhsa_next_free_sgpr 96", "  .amdhsa_accum_offset 256",
              "  .amdhsa_group_segment_fixed_size 0", "  .amdhsa_kernarg_size 48", "  .amdhsa_user_sgpr_count 2",
              "  .amdhsa_user_sgpr_kernarg_segment_ptr 1", "  .amdhsa_system_sgpr_workgroup_id_x 1",
              ".end_amdhsa_kernel", ""]
        bad = hazard.check_stream(L, "linear")
        bad += hazard.check_stream(body + ["s_cbranch_scc1 x"] + body, "loop")
        if bad:
            print("hazards:", bad, file=sys.stderr)
        return "\n".join(L)


def main():
    ap = argparse.ArgumentParser()
    ap.add_argument("-o", default="standalone__mha_softmax__near_ridge.s")
    ap.add_argument("--ring", type=int, default=9)
    ap.add_argument("--sm0", type=int, default=11)
    ap.add_argument("--stamps", action="store_true")
    ap.add_argument("--nt", action="store_true")
    ap.add_argument("--nosm", action="store_true")
    ap.add_argument("--nodma", action="store_true")
    ap.add_argument("--nobar", action="store_true")
    ap.add_argument("--nolds", action="store_true")
    ap.add_argument("--align", type=int, default=6)
    ap.add_argument("--dmagaps", type=lambda s: [int(x) for x in s.split(",")], default=[2, 8, 14, 20])
    o = ap.parse_args()
    open(o.o, "w").write(Gen(o).gen())


main()
```
